```python
import torch

def _softmax(x, axis=-1):
    return torch.softmax(x, dim=axis)
def _gelu(x):
    return torch.nn.functional.gelu(x, approximate="tanh")
def _silu(x):
    return torch.nn.functional.silu(x)
def _sigmoid(x):
    return torch.sigmoid(x)
def _layernorm(x, axis=-1, eps=1e-5):
    m = x.mean(dim=axis, keepdim=True)
    v = x.var(dim=axis, keepdim=True, unbiased=False)
    return (x - m) / torch.sqrt(v + eps)
def _scatter_add(tgt, idx, src, axis=0):
    return tgt.clone().index_add_(axis, idx, src)
def _segment_sum(src, seg, n):
    out = torch.zeros((n,) + src.shape[1:], dtype=src.dtype)
    return out.index_add_(0, seg, src)
def _pad(x, pw):
    flat = tuple(v for pair in reversed(pw) for v in pair)
    return torch.nn.functional.pad(x, flat)

kernel_name = 'interleave_layers__linear_kernel_hedgehog__mixer_s_mlp__prompt'

def setup_inputs():

    _w = (lambda a: (lambda t: t.to(torch.bfloat16) if t.is_floating_point() else t)(torch.as_tensor(a)))
    def _A_setup():
        B, S, D, H = 1, 2048, 1024, 32
        Dh = D // H
        return {
            "x": _w((lambda *s: torch.randn(*s, dtype=torch.bfloat16) * 0.05)(B, S, D)),
            "wqkv": _w((lambda *s: torch.randn(*s, dtype=torch.bfloat16) * 0.2)(D, 3 * D)),
            "w_phi": _w((lambda *s: torch.randn(*s, dtype=torch.bfloat16) * 0.2)(H, Dh, Dh) * (Dh ** -0.5)),
            "wo": _w((lambda *s: torch.randn(*s, dtype=torch.bfloat16) * 0.05)(D, D)),
        }
    _A_in = _A_setup()

    def _B_setup():
        B, S, D, F = 1, 2048, 1024, 3584
        return {
            "x":  _w((lambda *s: torch.randn(*s, dtype=torch.bfloat16) * 0.05)(B, S, D)),
            "w1": _w((lambda *s: torch.randn(*s, dtype=torch.bfloat16) * 3.2)(D, D) * (D ** -0.5)),
            "w2": _w((lambda *s: torch.randn(*s, dtype=torch.bfloat16) * 3.2)(D, D) * (D ** -0.5)),
            "w3": _w((lambda *s: torch.randn(*s, dtype=torch.bfloat16) * 3.2)(D, F) * (D ** -0.5)),
            "w4": _w((lambda *s: torch.randn(*s, dtype=torch.bfloat16) * 1.6)(F, D) * (F ** -0.5)),
        }
    _B_in = _B_setup()

    return {
        "A_x": _A_in["x"],
        "A_wqkv": _A_in["wqkv"],
        "A_w_phi": _A_in["w_phi"],
        "A_wo": _A_in["wo"],
        "B_x": _B_in["x"],
        "B_w1": _B_in["w1"],
        "B_w2": _B_in["w2"],
        "B_w3": _B_in["w3"],
        "B_w4": _B_in["w4"],
    }

def reference(A_x, A_wqkv, A_w_phi, A_wo, B_x, B_w1, B_w2, B_w3, B_w4):
    def _A_ref(x, wqkv, w_phi, wo):
        B, S, D = x.shape
        H = 32; Dh = D // H
        qkv = (lambda x, *d: x.permute(*d))((x @ wqkv).reshape(B, S, 3, H, Dh), 2, 0, 3, 1, 4)
        q, k, v = qkv[0], qkv[1], qkv[2]
        pq = torch.einsum("bhsd,hdf->bhsf", q, w_phi)
        pk = torch.einsum("bhsd,hdf->bhsf", k, w_phi)
        phi_q = torch.concatenate([_softmax(pq, axis=-1), _softmax(-pq, axis=-1)], axis=-1)
        phi_k = torch.concatenate([_softmax(pk, axis=-1), _softmax(-pk, axis=-1)], axis=-1)
        kv = torch.einsum("bhsf,bhsd->bhfd", phi_k, v)
        z  = torch.einsum("bhsf->bhf", phi_k)
        num = torch.einsum("bhqf,bhfd->bhqd", phi_q, kv)
        den = torch.einsum("bhqf,bhf->bhq", phi_q, z)[..., None] + 1e-6
        o = num / den
        return (lambda x, *d: x.permute(*d))(o, 0, 2, 1, 3).reshape(B, S, D) @ wo

    def _B_ref(x, w1, w2, w3, w4):
        B, S, D = x.shape
        h = _gelu(_layernorm(x, axis=-1) @ w1)
        c = D // 4
        g0 = _pad(h[:, :, 0*c:1*c], ((0, 0), (1, 0), (0, 0)))[:, :S, :]
        g1 = _pad(h[:, :, 1*c:2*c], ((0, 0), (0, 1), (0, 0)))[:, 1:, :]
        g2 = _pad(h[:, :, 2*c:3*c], ((0, 0), (2, 0), (0, 0)))[:, :S, :]
        g3 = _pad(h[:, :, 3*c:   ], ((0, 0), (0, 2), (0, 0)))[:, 2:, :]
        hs = torch.concatenate([g0, g1, g2, g3], axis=-1) @ w2
        x1 = x + hs
        h2 = _gelu(_layernorm(x1, axis=-1) @ w3) @ w4
        return x1 + h2

    x = A_x
    x = x + _A_ref(_layernorm(x, axis=-1), A_wqkv, A_w_phi, A_wo)
    x = x + _B_ref(_layernorm(x, axis=-1), B_w1, B_w2, B_w3, B_w4)
    x = x + _A_ref(_layernorm(x, axis=-1), A_wqkv, A_w_phi, A_wo)
    x = x + _B_ref(_layernorm(x, axis=-1), B_w1, B_w2, B_w3, B_w4)
    return x
```

```python
import sys
NAME="interleave_layers__linear_kernel_hedgehog__mixer_s_mlp__prompt"
MB=1<<20
WS_X=0; WS_PHIQ=4*MB; WS_O=12*MB; WS_H=16*MB; WS_X1=20*MB; WS_G=24*MB; WS_KVP=40*MB
WS_SX=50*MB; WS_SX1=51*MB; WS_CS=52*MB
KA=dict(x=0,wqkv=8,wphi=16,wo=24,w1=40,w2=48,w3=56,w4=64,out=72,ws=88)
class E:
    def __init__(s): s.l=[]
    def __call__(s,x): s.l.append(x)
    def lab(s,x): s.l.append(x+":")
    def txt(s): return "\n".join(s.l)+"\n"
def srd(e,d,ka,off,size):
    e(f"s_load_dwordx2 s[{d}:{d+1}], s[0:1], {KA[ka]}")
    return (d,off,size)
def srd_fin(e,t):
    d,off,size=t
    if off:
        e(f"s_add_u32 s{d}, s{d}, {off}"); e(f"s_addc_u32 s{d+1}, s{d+1}, 0")
    e(f"s_mov_b32 s{d+2}, {size}"); e(f"s_mov_b32 s{d+3}, 0x00020000")
def header(e,name,nwg):
    e.l.append(f".globl {name}\n.p2align 8\n.type {name},@function"); e.lab(name)
    e(f"s_cmp_ge_u32 s2, {nwg}"); e(f"s_cbranch_scc1 {name}_end")
def footer(e,name):
    e.lab(name+"_end"); e("s_endpgm")
LOG2E=0x3fb8aa3b
def gelu(e,v,t1,t2):
    e(f"v_mul_f32 v{t1}, v{v}, v{v}")
    e(f"v_mul_f32 v{t1}, 0x3d372713, v{t1}")
    e(f"v_fmac_f32 v{t1}, 1.0, v{t1}") if False else None
    e(f"v_add_f32 v{t1}, 1.0, v{t1}")
    e(f"v_mul_f32 v{t1}, v{t1}, v{v}")
    e(f"v_mul_f32 v{t1}, 0xc01362dc, v{t1}")
    e(f"v_exp_f32 v{t1}, v{t1}")
    e("s_nop 0")
    e(f"v_add_f32 v{t1}, 1.0, v{t1}")
    e(f"v_rcp_f32 v{t1}, v{t1}")
    e("s_nop 0")
    e(f"v_mul_f32 v{v}, v{v}, v{t1}")
def rnd2(e,a,b,t):
    e(f"v_cvt_pk_bf16_f32 v{t}, v{a}, v{b}")
    e(f"v_lshlrev_b32 v{a}, 16, v{t}")
    e(f"v_and_b32 v{b}, 0xffff0000, v{t}")

def swzmask(BN,row):
    m=(row>>3)&1
    if BN!=224: m|=((row>>1)&1)<<1
    return m

def gemm(name,K,BN,LDB,Asrc,LDA,Bkey,epi,S,xsrc=None,outdst=None,cs_off=0):
    e=E(); header(e,name,256)
    NT=BN//32; NBI=BN//32; CPR=BN//8; RS=BN*2
    ASZ=16384; STG=ASZ+64*RS; D=4+NBI; nIter=K//64
    STATOFF=S*STG
    lds=STATOFF+1024
    t=[srd(e,4,Asrc[0],Asrc[1],Asrc[2]), srd(e,8,Bkey,0,K*LDB*2)]
    e("s_and_b32 s20, s2, 7"); e("s_lshr_b32 s21, s2, 3")
    e("s_lshr_b32 s22, s20, 1"); e("s_lshl_b32 s22, s22, 2"); e("s_and_b32 s23, s21, 3"); e("s_add_u32 s22, s22, s23")
    e("s_and_b32 s23, s20, 1"); e("s_lshl_b32 s23, s23, 3"); e("s_lshr_b32 s24, s21, 2"); e("s_add_u32 s23, s23, s24")
    e("v_and_b32 v1, 63, v0"); e("v_lshrrev_b32 v2, 6, v0")
    e("s_waitcnt lgkmcnt(0)")
    for x in t: srd_fin(e,x)
    e("v_lshrrev_b32 v3, 3, v1"); e("v_and_b32 v4, 7, v1"); e("v_xor_b32 v4, v4, v3"); e("v_lshlrev_b32 v4, 4, v4")
    e("s_lshl_b32 s25, s22, 7"); e("v_lshlrev_b32 v5, 5, v2"); e("v_add_u32 v5, s25, v5"); e("v_add_u32 v5, v5, v3")
    e(f"s_mov_b32 s26, {LDA}"); e("v_mul_lo_u32 v5, v5, s26"); e("v_add_u32 v10, v5, v4")
    for i in range(1,4): e(f"v_add_u32 v{10+i}, {i*8*LDA}, v10")
    Mg=-(-65536//CPR)
    for idx in range(64*4*NBI): assert (idx*Mg)>>16==idx//CPR
    for i in range(NBI):
        e(f"v_mul_u32_u24 v3, {NBI*64}, v2"); e(f"v_add_u32 v3, {i*64}, v3"); e("v_add_u32 v3, v3, v1")
        e(f"v_mul_u32_u24 v4, {Mg}, v3"); e("v_lshrrev_b32 v4, 16, v4")
        e(f"v_mul_u32_u24 v5, {CPR}, v4"); e("v_sub_u32 v5, v3, v5")
        e("v_bfe_u32 v6, v4, 3, 1")
        if BN!=224:
            e("v_bfe_u32 v7, v4, 1, 1"); e("v_lshl_or_b32 v6, v7, 1, v6")
        e("v_lshlrev_b32 v6, 1, v6"); e("v_xor_b32 v5, v5, v6")
        if epi=="qkv":
            e("v_lshrrev_b32 v6, 1, v5")
            e("v_mul_u32_u24 v7, 43, v6"); e("v_lshrrev_b32 v7, 8, v7")
            e("v_mul_u32_u24 v8, 12, v7"); e("v_sub_u32 v8, v5, v8")
            e("v_lshrrev_b32 v9, 2, v8"); e("v_and_b32 v8, 3, v8")
            e("v_lshlrev_b32 v9, 11, v9"); e("v_lshl_add_u32 v9, v7, 6, v9"); e("v_lshl_add_u32 v9, v8, 4, v9")
            e("s_lshl_b32 s25, s23, 7"); e("v_add_u32 v9, s25, v9")
        else:
            e(f"s_mul_i32 s25, s23, {BN*2}"); e("v_lshlrev_b32 v9, 4, v5"); e("v_add_u32 v9, s25, v9")
        e(f"v_mul_u32_u24 v4, {LDB*2}, v4"); e(f"v_add_u32 v{14+i}, v4, v9")
    e("v_lshrrev_b32 v3, 1, v2"); e("v_lshlrev_b32 v3, 6, v3"); e("v_and_b32 v4, 15, v1"); e("v_add_u32 v3, v3, v4"); e("v_lshlrev_b32 v3, 7, v3")
    e("v_lshrrev_b32 v5, 4, v1"); e("v_and_b32 v6, 7, v1"); e("v_xor_b32 v5, v5, v6"); e("v_lshlrev_b32 v5, 4, v5")
    e("v_add_u32 v21, v3, v5"); e("v_xor_b32 v22, 64, v21")
    e("v_lshrrev_b32 v3, 4, v1"); e("v_bfe_u32 v4, v1, 2, 2"); e("v_lshl_add_u32 v5, v3, 3, v4")
    e(f"v_mul_u32_u24 v5, {RS}, v5"); e("v_and_b32 v6, 3, v1"); e("v_lshl_add_u32 v5, v6, 3, v5"); e(f"v_add_u32 v5, {ASZ}, v5")
    e("v_and_b32 v6, 1, v3")
    if BN!=224:
        e("v_bfe_u32 v7, v1, 3, 1"); e("v_lshl_or_b32 v6, v7, 1, v6")
    e("v_and_b32 v7, 1, v2"); e(f"v_mul_u32_u24 v7, {NT}, v7")
    for nt in range(NT):
        e(f"v_add_u32 v8, {nt}, v7"); e("v_xor_b32 v8, v8, v6"); e(f"v_lshl_add_u32 v{25+nt}, v8, 5, v5")
    for r in range(4*4*NT): e(f"v_accvgpr_write_b32 a{r}, 0")
    def dma(stage,looped):
        out=[]; b=stage%S
        if not looped:
            out.append(f"s_mov_b32 s16, {stage*128}"); out.append(f"s_mov_b32 s17, {stage*64*LDB*2}")
            if epi=="w2" and stage%4==0:
                g=stage//4; prev=[-1,1,-2,2][g-1] if g>0 else 0
                cur=[-1,1,-2,2][g]
                for i in range(4): out.append(f"v_add_u32 v{10+i}, {((cur-prev)*LDA)&0xffffffff}, v{10+i}")
        for i in range(4):
            out.append(f"s_mov_b32 m0, {b*STG}+{i*1024}+s_wA");
            out.append(f"buffer_load_dwordx4 v{10+i}, s[4:7], s16 offen lds")
        for i in range(NBI):
            out.append(f"s_mov_b32 m0, {b*STG+ASZ+i*1024}+s_wB")
            out.append(f"buffer_load_dwordx4 v{14+i}, s[8:11], s17 offen lds")
        if looped:
            out.append("s_add_u32 s16, s16, 128"); out.append(f"s_add_u32 s17, s17, {64*LDB*2}")
        res=[]
        for o in out:
            if "+s_w" in o:
                imm=eval(o.split("m0, ")[1].rsplit("+",1)[0]); r="s27" if o.endswith("s_wA") else "s28"
                res.append(f"s_add_u32 m0, {r}, {imm}"); res.append("s_nop 0")
            else: res.append(o)
        return res
    e("v_readfirstlane_b32 s27, v2"); e("s_nop 3"); e(f"s_mul_i32 s28, s27, {NBI*1024}"); e("s_lshl_b32 s27, s27, 12")
    def reads(stage,h,st):
        b=stage%S; o=[]
        a0=40 if st==0 else 84; b0=56 if st==0 else 100
        o.append(f"v_add_u32 v23, {b*STG}, v{21+h}")
        for nt in range(NT): o.append(f"v_add_u32 v{32+nt}, {b*STG}, v{25+nt}")
        for mt in range(4): o.append(f"ds_read_b128 v[{a0+4*mt}:{a0+4*mt+3}], v23 offset:{mt*2048}")
        for nt in range(NT):
            for r in range(2):
                o.append(f"ds_read_b64_tr_b16 v[{b0+4*nt+2*r}:{b0+4*nt+2*r+1}], v{32+nt} offset:{(32*h+4*r)*RS}")
        return o
    def mfmas(st):
        a0=40 if st==0 else 84; b0=56 if st==0 else 100; o=[]
        for nt in range(NT):
            for mt in range(4):
                c=(mt*NT+nt)*4; A=f"v[{a0+4*mt}:{a0+4*mt+3}]"; B=f"v[{b0+4*nt}:{b0+4*nt+3}]"
                if epi=="qkv" and nt>=4: o.append(f"v_mfma_f32_16x16x32_bf16 a[{c}:{c+3}], {A}, {B}, a[{c}:{c+3}]")
                else: o.append(f"v_mfma_f32_16x16x32_bf16 a[{c}:{c+3}], {B}, {A}, a[{c}:{c+3}]")
        return o
    def inter(m,f):
        n=len(m); k=0
        for i,x in enumerate(m):
            e(x)
            tgt=(len(f)*(i+1))//n
            while k<tgt: e(f[k]); k+=1
    looped = nIter>16
    if looped: e("s_mov_b32 s16, 0"); e("s_mov_b32 s17, 0")
    for s_ in range(S-1):
        for x in dma(s_,looped): e(x)
    if epi in("qkv","w1","w3","w2"):
        so=WS_SX1 if epi=="w3" else WS_SX
        tt=srd(e,12,'ws',so,2048*256); e("s_waitcnt lgkmcnt(0)"); srd_fin(e,tt)
        e("s_lshl_b32 s25, s22, 15"); e("v_lshlrev_b32 v3, 7, v0"); e("v_add_u32 v3, s25, v3")
        for i in range(8): e(f"buffer_load_dwordx4 v[{128+4*i}:{131+4*i}], v3, s[12:15], 0 offen offset:{16*i}")
        e("s_waitcnt vmcnt(0)")
        for i in range(1,16):
            e(f"v_add_f32 v128, v128, v{128+2*i}"); e(f"v_add_f32 v129, v129, v{129+2*i}")
        e("s_nop 1")
        e("v_add_f32_dpp v128, v128, v128 quad_perm:[1,0,3,2] row_mask:0xf bank_mask:0xf")
        e("v_add_f32_dpp v129, v129, v129 quad_perm:[1,0,3,2] row_mask:0xf bank_mask:0xf")
        e("v_mul_f32 v128, 0x3a800000, v128"); e("v_mul_f32 v129, 0x3a800000, v129")
        e("v_fma_f32 v129, -v128, v128, v129"); e("v_max_f32 v129, 0, v129")
        e("v_add_f32 v130, 0x3727c5ac, v129"); e("v_rsq_f32 v130, v130"); e("s_nop 0")
        if epi=="w1":
            e("v_mul_f32 v131, v130, v130"); e("v_mul_f32 v131, v131, v129"); e("v_add_f32 v131, 0x3727c5ac, v131")
            e("v_rsq_f32 v131, v131"); e("s_nop 0"); e("v_mul_f32 v130, v130, v131")
        e("v_mov_b32 v129, v130"); e("v_lshrrev_b32 v3, 1, v0"); e("v_lshlrev_b32 v3, 3, v3")
        e(f"v_add_u32 v3, {STATOFF}, v3"); e("ds_write_b64 v3, v[128:129]")
    e(f"s_waitcnt vmcnt({(S-2)*D}) lgkmcnt(0)"); e("s_barrier")
    for x in reads(0,0,0): e(x)
    def iteration(i):
        e("s_waitcnt lgkmcnt(0)")
        inter(mfmas(0),reads(i,1,1))
        if looped: w=(S-3)*D
        else: w=max(0,min(i+S-2,nIter-1)-(i+1))*D
        e(f"s_waitcnt vmcnt({w})"); e("s_barrier"); e("s_waitcnt lgkmcnt(0)")
        f=[]
        if looped or i+S-1<nIter: f+=dma(i+S-1,looped)
        f+=reads(i+1,0,0)
        inter(mfmas(1),f)
    if looped:
        e(f"s_mov_b32 s18, {nIter//S}"); e.lab(name+"_loop")
        for u in range(S): iteration(u)
        e("s_sub_u32 s18, s18, 1"); e("s_cmp_lg_u32 s18, 0"); e(f"s_cbranch_scc1 {name}_loop")
    else:
        for i in range(nIter): iteration(i)
    e("s_waitcnt vmcnt(0) lgkmcnt(0)"); e("s_nop 15"); e("s_nop 7")
    e("v_and_b32 v4, 15, v1"); e("v_lshrrev_b32 v5, 4, v1"); e("v_lshrrev_b32 v6, 1, v2"); e("v_and_b32 v7, 1, v2")
    e("v_lshl_add_u32 v8, v6, 6, v4")
    e("s_lshl_b32 s25, s22, 7"); e("v_add_u32 v9, s25, v8")
    e("v_xor_b32 v60, 16, v1"); e("v_lshlrev_b32 v60, 2, v60"); e("v_xor_b32 v61, 32, v1"); e("v_lshlrev_b32 v61, 2, v61")
    uses_stats = epi in("qkv","w1","w3","w2")
    if uses_stats:
        e("v_lshlrev_b32 v3, 3, v8"); e(f"v_add_u32 v3, {STATOFF}, v3")
        for mt in range(4): e(f"ds_read_b64 v[{64+2*mt}:{65+2*mt}], v3 offset:{mt*128}")
    if epi!="qkv":
        e(f"s_mul_i32 s25, s23, {BN}"); e(f"v_mul_u32_u24 v10, {BN//2}, v7"); e("v_add_u32 v10, s25, v10"); e("v_lshl_add_u32 v10, v5, 2, v10")
        LDO={'w1':1024,'w2':1024,'w3':3584,'w4':1024,'wo':1024}[epi]
        e(f"s_mov_b32 s26, {LDO}"); e("v_mul_lo_u32 v11, v9, s26"); e("v_add_u32 v11, v11, v10"); e("v_lshlrev_b32 v11, 1, v11")
        tl=[srd(e,12,outdst[0],outdst[1],2048*LDO*2)]
        if epi in("w1","w3"): tl.append(srd(e,4,'ws',WS_CS+cs_off*4,7680*4-cs_off*4))
        if epi in("w2","w4","wo"): tl.append(srd(e,4,xsrc[0],xsrc[1],4*MB))
        if epi=="w4": tl.append(srd(e,8,'ws',WS_X1,4*MB))
        if epi in("w2","w4","wo"): tl.append(srd(e,16,'ws',WS_SX1 if epi=="w2" else WS_SX,2048*256))
        e("s_waitcnt lgkmcnt(0)")
        for x in tl: srd_fin(e,x)
        if epi in("w1","w3"):
            e("v_lshlrev_b32 v12, 2, v10")
            for nt in range(NT): e(f"buffer_load_dwordx4 v[{72+4*nt}:{75+4*nt}], v12, s[4:7], 0 offen offset:{nt*64}")
        for mt in range(4):
            ro=mt*16*LDO*2
            e(f"v_add_u32 v13, {ro}, v11")
            if epi in("w2","w4","wo"):
                for nt in range(NT):
                    e(f"buffer_load_dwordx2 v[{72+2*nt}:{73+2*nt}], v13, s[4:7], 0 offen offset:{nt*32}")
                    if epi=="w4": e(f"buffer_load_dwordx2 v[{80+2*nt}:{81+2*nt}], v13, s[8:11], 0 offen offset:{nt*32}")
                e("v_mov_b32 v14, 0"); e("v_mov_b32 v15, 0")
            e("s_waitcnt vmcnt(0) lgkmcnt(0)")
            for nt in range(NT):
                c=(mt*NT+nt)*4
                for j in range(4): e(f"v_accvgpr_read_b32 v{104+j}, a{c+j}")
                if epi in("w1","w3"):
                    for j in range(4):
                        e(f"v_fma_f32 v{104+j}, -v{64+2*mt}, v{72+4*nt+j}, v{104+j}"); e(f"v_mul_f32 v{104+j}, v{104+j}, v{65+2*mt}")
                    rnd2(e,104,105,110); rnd2(e,106,107,110)
                    for j in range(4): gelu(e,104+j,111,112)
                    e("v_cvt_pk_bf16_f32 v108, v104, v105"); e("v_cvt_pk_bf16_f32 v109, v106, v107")
                else:
                    rnd2(e,104,105,110); rnd2(e,106,107,110)
                    for p in range(2):
                        e(f"v_lshlrev_b32 v{112+2*p}, 16, v{72+2*nt+p}"); e(f"v_and_b32 v{113+2*p}, 0xffff0000, v{72+2*nt+p}")
                    if epi=="w2":
                        for j in range(4):
                            e(f"v_sub_f32 v{112+j}, v{112+j}, v{64+2*mt}"); e(f"v_mul_f32 v{112+j}, v{112+j}, v{65+2*mt}")
                        rnd2(e,112,113,110); rnd2(e,114,115,110)
                    if epi=="w4":
                        for p in range(2):
                            e(f"v_lshlrev_b32 v{116+2*p}, 16, v{80+2*nt+p}"); e(f"v_and_b32 v{117+2*p}, 0xffff0000, v{80+2*nt+p}")
                        for j in range(4): e(f"v_add_f32 v{104+j}, v{104+j}, v{116+j}")
                        rnd2(e,104,105,110); rnd2(e,106,107,110)
                    for j in range(4): e(f"v_add_f32 v{104+j}, v{104+j}, v{112+j}")
                    rnd2(e,104,105,108); rnd2(e,106,107,109)
                    for j in range(4):
                        e(f"v_add_f32 v14, v14, v{104+j}"); e(f"v_fmac_f32 v15, v{104+j}, v{104+j}")
                e(f"buffer_store_dwordx2 v[108:109], v13, s[12:15], 0 offen offset:{nt*32}")
                e("s_nop 1")
            if epi in("w2","w4","wo"):
                for x in(60,61):
                    e(f"ds_bpermute_b32 v16, v{x}, v14"); e(f"ds_bpermute_b32 v17, v{x}, v15"); e("s_waitcnt lgkmcnt(0)")
                    e("v_add_f32 v14, v14, v16"); e("v_add_f32 v15, v15, v17")
                e(f"v_add_u32 v16, {mt*16}, v9"); e("v_lshlrev_b32 v16, 8, v16")
                e("s_lshl_b32 s25, s23, 4"); e("v_add_u32 v16, s25, v16"); e("v_lshl_add_u32 v16, v7, 3, v16")
                e("v_cmp_gt_u32 vcc, 16, v1"); e("s_and_saveexec_b64 s[30:31], vcc")
                e("buffer_store_dwordx2 v[14:15], v16, s[16:19], 0 offen"); e("s_mov_b64 exec, s[30:31]"); e("s_nop 1")
    else:
        tl=[srd(e,4,'ws',WS_CS,7680*4),srd(e,8,'wphi',0,65536),srd(e,12,'ws',WS_PHIQ,8*MB),srd(e,16,'ws',WS_KVP,32*32*2112*4)]
        e("s_waitcnt lgkmcnt(0)")
        for x in tl: srd_fin(e,x)
        e("s_lshl_b32 s25, s23, 1"); e("v_add_u32 v10, s25, v7")
        e("v_lshlrev_b32 v11, 5, v10"); e("v_lshl_add_u32 v12, v5, 2, v11"); e("v_lshlrev_b32 v12, 2, v12")
        for nt in range(4): e(f"buffer_load_dwordx4 v[{72+4*nt}:{75+4*nt}], v12, s[4:7], 0 offen offset:{(nt>>1)*0+(nt&1)*64}" if nt<2 else f"buffer_load_dwordx4 v[{72+4*nt}:{75+4*nt}], v13, s[4:7], 0 offen offset:{(nt&1)*64}") if nt!=1 else (e(f"buffer_load_dwordx4 v[76:79], v12, s[4:7], 0 offen offset:64"), e("v_add_u32 v13, 4096, v12"))
        e("v_add_u32 v14, v11, v4"); e("v_lshlrev_b32 v14, 2, v14"); e("v_add_u32 v14, 8192, v14")
        e("buffer_load_dword v88, v14, s[4:7], 0 offen"); e("buffer_load_dword v89, v14, s[4:7], 0 offen offset:64")
        e("v_lshl_add_u32 v15, v6, 6, 0"); e("v_lshl_add_u32 v15, v5, 2, v15"); e("v_lshlrev_b32 v15, 3, v15"); e(f"v_add_u32 v15, {STATOFF}, v15")
        e("v_lshlrev_b32 v16, 11, v10"); e("v_lshl_add_u32 v16, v5, 8, v16"); e("v_lshl_add_u32 v16, v4, 1, v16")
        for ft in range(2):
            for dt in range(2):
                for j in range(4):
                    e(f"buffer_load_ushort v{128+(ft*2+dt)*4+j}, v16, s[8:11], 0 offen offset:{dt*1024+j*64+ft*32}")
        e("s_waitcnt vmcnt(0)")
        for fd in range(4):
            e(f"v_lshl_or_b32 v{90+2*fd}, v{129+4*fd}, 16, v{128+4*fd}"); e(f"v_lshl_or_b32 v{91+2*fd}, v{131+4*fd}, 16, v{130+4*fd}")
        e("v_mov_b32 v98, 0x3f803f80"); e("v_mov_b32 v99, 0x3f803f80")
        for r in range(48): e(f"v_accvgpr_write_b32 a{112+r}, 0")
        for mt in range(4):
            e("s_waitcnt lgkmcnt(0)")
            e(f"ds_read_b128 v[160:163], v15 offset:{mt*128}"); e(f"ds_read_b128 v[164:167], v15 offset:{mt*128+16}")
            for nt in range(4):
                c=(mt*NT+nt)*4
                for j in range(4):
                    e(f"v_accvgpr_read_b32 v{104+j}, a{c+j}"); e(f"v_fma_f32 v{104+j}, -v{64+2*mt}, v{72+4*nt+j}, v{104+j}"); e(f"v_mul_f32 v{104+j}, v{104+j}, v{65+2*mt}")
                e(f"v_cvt_pk_bf16_f32 v{168+2*nt}, v104, v105"); e(f"v_cvt_pk_bf16_f32 v{169+2*nt}, v106, v107")
            e("s_waitcnt lgkmcnt(0)")
            for nt in range(2):
                c=(mt*NT+4+nt)*4
                for j in range(4):
                    e(f"v_accvgpr_read_b32 v{104+j}, a{c+j}"); e(f"v_fma_f32 v{104+j}, -v{160+2*j}, v{88+nt}, v{104+j}"); e(f"v_mul_f32 v{104+j}, v{104+j}, v{161+2*j}")
                e(f"v_cvt_pk_bf16_f32 v{176+2*nt}, v104, v105"); e(f"v_cvt_pk_bf16_f32 v{177+2*nt}, v106, v107")
            e("s_nop 1")
            for ft in range(2):
                for dt in range(2):
                    cq="0" if dt==0 else f"v[{180+4*ft}:{183+4*ft}]"; ck="0" if dt==0 else f"v[{188+4*ft}:{191+4*ft}]"
                    W=f"v[{90+2*(ft*2+dt)}:{91+2*(ft*2+dt)}]"
                    e(f"v_mfma_f32_16x16x16_bf16 v[{180+4*ft}:{183+4*ft}], {W}, v[{168+2*dt}:{169+2*dt}], {cq}")
                    e(f"v_mfma_f32_16x16x16_bf16 v[{188+4*ft}:{191+4*ft}], v[{172+2*dt}:{173+2*dt}], {W}, {ck}")
            e("s_nop 15")
            for r in range(0,16,2): rnd2(e,180+r,181+r,110)
            e("v_max3_f32 v104, v180, v181, v182"); e("v_max3_f32 v104, v104, v183, v184"); e("v_max3_f32 v104, v104, v185, v186"); e("v_max_f32 v104, v104, v187")
            e("v_min3_f32 v105, v180, v181, v182"); e("v_min3_f32 v105, v105, v183, v184"); e("v_min3_f32 v105, v105, v185, v186"); e("v_min_f32 v105, v105, v187")
            for x in(60,61):
                e(f"ds_bpermute_b32 v106, v{x}, v104"); e(f"ds_bpermute_b32 v107, v{x}, v105"); e("s_waitcnt lgkmcnt(0)")
                e("v_max_f32 v104, v104, v106"); e("v_min_f32 v105, v105, v107")
            e("v_mov_b32 v106, 0"); e("v_mov_b32 v107, 0")
            for r in range(8):
                e(f"v_sub_f32 v{128+r}, v{180+r}, v104"); e(f"v_sub_f32 v{136+r}, v105, v{180+r}")
                e(f"v_mul_f32 v{128+r}, {LOG2E}, v{128+r}"); e(f"v_mul_f32 v{136+r}, {LOG2E}, v{136+r}")
                e(f"v_exp_f32 v{128+r}, v{128+r}"); e(f"v_exp_f32 v{136+r}, v{136+r}"); e("s_nop 0")
                e(f"v_add_f32 v106, v106, v{128+r}"); e(f"v_add_f32 v107, v107, v{136+r}")
            for x in(60,61):
                e(f"ds_bpermute_b32 v108, v{x}, v106"); e(f"ds_bpermute_b32 v109, v{x}, v107"); e("s_waitcnt lgkmcnt(0)")
                e("v_add_f32 v106, v106, v108"); e("v_add_f32 v107, v107, v109")
            e("v_rcp_f32 v106, v106"); e("v_rcp_f32 v107, v107"); e("s_nop 0")
            for r in range(8):
                e(f"v_mul_f32 v{128+r}, v{128+r}, v106"); e(f"v_mul_f32 v{136+r}, v{136+r}, v107")
            e(f"v_add_u32 v108, {mt*16}, v9"); e("v_lshl_add_u32 v108, v108, 5, v10"); e("v_lshlrev_b32 v108, 7, v108"); e("v_lshl_add_u32 v108, v5, 3, v108")
            for sg in range(2):
                for ft in range(2):
                    b=128+8*sg+4*ft
                    e(f"v_cvt_pk_bf16_f32 v110, v{b}, v{b+1}"); e(f"v_cvt_pk_bf16_f32 v111, v{b+2}, v{b+3}")
                    e(f"buffer_store_dwordx2 v[110:111], v108, s[12:15], 0 offen offset:{sg*64+ft*32}"); e("s_nop 1")
            for j in range(4):
                a,b=188+j,192+j
                e(f"v_max_f32 v104, v{a}, v{b}"); e(f"v_min_f32 v105, v{a}, v{b}")
                for sh in(8,4,2,1):
                    e("s_nop 1")
                    e(f"v_max_f32_dpp v104, v104, v104 row_ror:{sh} row_mask:0xf bank_mask:0xf")
                    e(f"v_min_f32_dpp v105, v105, v105 row_ror:{sh} row_mask:0xf bank_mask:0xf")
                for q_,r in enumerate((a,b)):
                    e(f"v_sub_f32 v{128+4*q_+j}, v{r}, v104"); e(f"v_sub_f32 v{136+4*q_+j}, v105, v{r}")
                    e(f"v_mul_f32 v{128+4*q_+j}, {LOG2E}, v{128+4*q_+j}"); e(f"v_mul_f32 v{136+4*q_+j}, {LOG2E}, v{136+4*q_+j}")
                    e(f"v_exp_f32 v{128+4*q_+j}, v{128+4*q_+j}"); e(f"v_exp_f32 v{136+4*q_+j}, v{136+4*q_+j}")
                e("s_nop 0")
                e(f"v_add_f32 v104, v{128+j}, v{132+j}"); e(f"v_add_f32 v105, v{136+j}, v{140+j}")
                for sh in(8,4,2,1):
                    e("s_nop 1")
                    e(f"v_add_f32_dpp v104, v104, v104 row_ror:{sh} row_mask:0xf bank_mask:0xf")
                    e(f"v_add_f32_dpp v105, v105, v105 row_ror:{sh} row_mask:0xf bank_mask:0xf")
                e("v_rcp_f32 v104, v104"); e("v_rcp_f32 v105, v105"); e("s_nop 0")
                for q_ in range(2):
                    e(f"v_mul_f32 v{128+4*q_+j}, v{128+4*q_+j}, v104"); e(f"v_mul_f32 v{136+4*q_+j}, v{136+4*q_+j}, v105")
            for fi in range(4):
                e(f"v_cvt_pk_bf16_f32 v{144+2*fi}, v{128+4*fi}, v{129+4*fi}"); e(f"v_cvt_pk_bf16_f32 v{145+2*fi}, v{130+4*fi}, v{131+4*fi}")
            e("s_nop 1")
            for fi in range(4):
                for dt in range(3):
                    c=112+(fi*3+dt)*4; B=f"v[{176+2*dt}:{177+2*dt}]" if dt<2 else "v[98:99]"
                    e(f"v_mfma_f32_16x16x16_bf16 a[{c}:{c+3}], v[{144+2*fi}:{145+2*fi}], {B}, a[{c}:{c+3}]")
        e("s_nop 15")
        e("s_lshl_b32 s25, s22, 1"); e("v_add_u32 v104, s25, v6"); e("v_lshl_add_u32 v104, v10, 5, v104"); e("s_movk_i32 s26, 2112"); e("v_mul_lo_u32 v104, v104, s26")
        e("v_lshl_add_u32 v105, v5, 7, v104"); e("v_add_u32 v105, v105, v4"); e("v_lshlrev_b32 v105, 2, v105")
        for fi in range(4):
            for dt in range(2):
                for j in range(4):
                    e(f"v_accvgpr_read_b32 v106, a{112+(fi*3+dt)*4+j}")
                    e(f"v_add_u32 v107, {fi*2048}, v105"); e(f"buffer_store_dword v106, v107, s[16:19], 0 offen offset:{j*128+dt*64}")
        e("v_lshl_add_u32 v105, v5, 2, v104"); e("v_lshlrev_b32 v105, 2, v105"); e("v_add_u32 v105, 8192, v105")
        e("v_cmp_eq_u32 vcc, 0, v4"); e("s_and_saveexec_b64 s[30:31], vcc")
        for fi in range(4):
            for j in range(4):
                e(f"v_accvgpr_read_b32 v106, a{112+(fi*3+2)*4+j}")
                e(f"buffer_store_dword v106, v105, s[16:19], 0 offen offset:{(fi*16+j)*4}")
        e("s_mov_b64 exec, s[30:31]")
    footer(e,name)
    return e.txt(),lds

def a3(name):
    e=E(); header(e,name,256)
    tl=[srd(e,4,'ws',WS_KVP,32*32*2112*4),srd(e,8,'ws',WS_PHIQ,8*MB),srd(e,12,'ws',WS_O,4*MB)]
    e("s_lshr_b32 s20, s2, 3"); e("s_and_b32 s21, s2, 7")
    e("v_and_b32 v1, 63, v0"); e("v_lshrrev_b32 v2, 6, v0"); e("v_and_b32 v4, 15, v1"); e("v_lshrrev_b32 v5, 4, v1")
    e("s_waitcnt lgkmcnt(0)")
    for x in tl: srd_fin(e,x)
    e("v_lshlrev_b32 v6, 2, v0"); e("v_mov_b32 v7, 0")
    for i in range(7): e(f"ds_write_b32 v6, v7 offset:{i*1024}")
    e("s_waitcnt lgkmcnt(0)"); e("s_barrier")
    e(f"s_mul_i32 s22, s20, {32*2112*4}")
    for it in range(9):
        e(f"v_add_u32 v8, {it*256}, v0"); e("v_lshlrev_b32 v9, 2, v8"); e("v_add_u32 v9, s22, v9")
        e("v_mov_b32 v10, 0")
        for p in range(32):
            e(f"v_add_u32 v11, {p*2112*4}, v9"); e(f"buffer_load_dword v{20+p}, v11, s[4:7], 0 offen")
        e("s_waitcnt vmcnt(0)")
        for p in range(32): e(f"v_add_f32 v10, v10, v{20+p}")
        e("v_cvt_pk_bf16_f32 v10, v10, v10")
        e("v_lshrrev_b32 v12, 5, v8"); e("v_and_b32 v13, 31, v8")
        if it==8:
            e("v_subrev_u32 v12, 2048, v8"); e("v_mov_b32 v13, 32"); e("v_cmp_gt_u32 vcc, 64, v0"); e("s_and_saveexec_b64 s[30:31], vcc")
        e("v_mul_u32_u24 v13, 144, v13"); e("v_lshl_add_u32 v13, v12, 1, v13"); e("ds_write_b16 v13, v10")
        if it==8: e("s_mov_b64 exec, s[30:31]")
    e("s_waitcnt lgkmcnt(0)"); e("s_barrier")
    e("v_mul_u32_u24 v8, 144, v4"); e("v_lshl_add_u32 v8, v5, 4, v8")
    for dt in range(3):
        for kt in range(2): e(f"ds_read_b128 v[{60+(dt*2+kt)*4}:{63+(dt*2+kt)*4}], v8 offset:{dt*16*144+kt*64}")
    e("s_lshl_b32 s23, s21, 8"); e("v_lshl_add_u32 v9, v2, 6, v4"); e("v_add_u32 v9, s23, v9")
    e("v_lshl_add_u32 v10, v9, 5, s20"); e("v_lshlrev_b32 v10, 7, v10"); e("v_lshl_add_u32 v10, v5, 4, v10")
    for mt in range(4):
        for kt in range(2): e(f"v_add_u32 v11, {mt*16*4096+kt*64}, v10"); e(f"buffer_load_dwordx4 v[{100+(mt*2+kt)*4}:{103+(mt*2+kt)*4}], v11, s[8:11], 0 offen")
    e("v_lshlrev_b32 v12, 2, v4")
    e("v_lshlrev_b32 v13, 11, v9"); e("s_lshl_b32 s24, s20, 6"); e("v_add_u32 v13, s24, v13"); e("v_lshl_add_u32 v13, v5, 3, v13")
    e("s_waitcnt vmcnt(0) lgkmcnt(0)")
    for mt in range(4):
        for dt in range(3):
            for kt in range(2):
                c="0" if kt==0 else f"v[{140+4*dt}:{143+4*dt}]"
                e(f"v_mfma_f32_16x16x32_bf16 v[{140+4*dt}:{143+4*dt}], v[{60+(dt*2+kt)*4}:{63+(dt*2+kt)*4}], v[{100+(mt*2+kt)*4}:{103+(mt*2+kt)*4}], {c}")
        e("s_nop 15")
        e("ds_bpermute_b32 v152, v12, v148"); e("s_waitcnt lgkmcnt(0)")
        e("v_cvt_pk_bf16_f32 v152, v152, v152"); e("v_lshlrev_b32 v152, 16, v152"); e("v_add_f32 v152, 0x358637bd, v152")
        e("v_cvt_pk_bf16_f32 v152, v152, v152"); e("v_lshlrev_b32 v152, 16, v152"); e("v_rcp_f32 v152, v152")
        for r in range(0,8,2): rnd2(e,140+r,141+r,153)
        for r in range(8): e(f"v_mul_f32 v{140+r}, v{140+r}, v152")
        e(f"v_add_u32 v14, {mt*16*2048}, v13")
        for dt in range(2):
            e(f"v_cvt_pk_bf16_f32 v154, v{140+4*dt}, v{141+4*dt}"); e(f"v_cvt_pk_bf16_f32 v155, v{142+4*dt}, v{143+4*dt}")
            e(f"buffer_store_dwordx2 v[154:155], v14, s[12:15], 0 offen offset:{dt*32}"); e("s_nop 1")
    footer(e,name); return e.txt(),7168

def prep(name):
    e=E(); header(e,name,316)
    e("v_and_b32 v1, 63, v0"); e("v_lshrrev_b32 v2, 6, v0")
    e("s_cmp_ge_u32 s2, 256"); e(f"s_cbranch_scc1 {name}_cs")
    tl=[srd(e,4,'x',0,4*MB),srd(e,8,'ws',WS_SX,2048*256),srd(e,12,'ws',WS_X,4*MB)]; e("s_waitcnt lgkmcnt(0)")
    for x in tl: srd_fin(e,x)
    e("s_lshl_b32 s20, s2, 3"); e("v_lshl_add_u32 v3, v2, 1, s20")
    for rr in range(2):
        e(f"v_add_u32 v4, {rr}, v3"); e("v_lshlrev_b32 v5, 11, v4"); e("v_lshl_add_u32 v5, v1, 5, v5")
        e("buffer_load_dwordx4 v[8:11], v5, s[4:7], 0 offen"); e("buffer_load_dwordx4 v[12:15], v5, s[4:7], 0 offen offset:16")
        e("v_mov_b32 v16, 0"); e("v_mov_b32 v17, 0"); e("s_waitcnt vmcnt(0)")
        e("buffer_store_dwordx4 v[8:11], v5, s[12:15], 0 offen"); e("buffer_store_dwordx4 v[12:15], v5, s[12:15], 0 offen offset:16")
        for r in range(8,16):
            e(f"v_lshlrev_b32 v18, 16, v{r}"); e(f"v_and_b32 v19, 0xffff0000, v{r}")
            e("v_add_f32 v16, v16, v18"); e("v_fmac_f32 v17, v18, v18"); e("v_add_f32 v16, v16, v19"); e("v_fmac_f32 v17, v19, v19")
        e("s_nop 1")
        e("v_add_f32_dpp v16, v16, v16 quad_perm:[1,0,3,2] row_mask:0xf bank_mask:0xf"); e("v_add_f32_dpp v17, v17, v17 quad_perm:[1,0,3,2] row_mask:0xf bank_mask:0xf")
        e("v_lshlrev_b32 v5, 8, v4"); e("v_lshrrev_b32 v6, 1, v1"); e("v_lshl_add_u32 v5, v6, 3, v5")
        e("buffer_store_dwordx2 v[16:17], v5, s[8:11], 0 offen"); e("s_nop 1")
    e(f"s_branch {name}_end")
    e.lab(name+"_cs")
    e("s_sub_u32 s20, s2, 256")
    e("s_load_dwordx2 s[4:5], s[0:1], 8"); e("s_load_dwordx2 s[12:13], s[0:1], 40"); e("s_load_dwordx2 s[14:15], s[0:1], 56")
    tl=[srd(e,8,'ws',WS_CS,7680*4)]; e("s_waitcnt lgkmcnt(0)"); srd_fin(e,tl[0])
    e("s_mov_b32 s21, s20"); e("s_mov_b32 s22, 6144"); e(f"s_mov_b32 s6, {1024*6144}")
    e("s_cmp_lt_u32 s20, 24"); e(f"s_cbranch_scc1 {name}_go")
    e("s_mov_b64 s[4:5], s[12:13]"); e("s_sub_u32 s21, s20, 24"); e("s_mov_b32 s22, 2048"); e(f"s_mov_b32 s6, {1024*2048}")
    e("s_cmp_lt_u32 s20, 32"); e(f"s_cbranch_scc1 {name}_go")
    e("s_mov_b64 s[4:5], s[14:15]"); e("s_sub_u32 s21, s20, 32"); e("s_mov_b32 s22, 7168"); e(f"s_mov_b32 s6, {1024*7168}")
    e.lab(name+"_go"); e("s_mov_b32 s7, 0x00020000")
    e("v_lshlrev_b32 v3, 8, v2"); e("v_mul_lo_u32 v3, v3, s22"); e("s_lshl_b32 s23, s21, 8"); e("v_add_u32 v3, s23, v3"); e("v_lshl_add_u32 v3, v1, 2, v3")
    e("v_mov_b32 v16, 0"); e("v_mov_b32 v17, 0"); e("s_mov_b32 s24, 16"); e("s_mov_b32 s25, 0")
    e.lab(name+"_lp")
    for r in range(16):
        e(f"buffer_load_dword v{20+r}, v3, s[4:7], s25 offen"); e("s_add_u32 s25, s25, s22")
    e("s_waitcnt vmcnt(0)")
    for r in range(16):
        e(f"v_lshlrev_b32 v18, 16, v{20+r}"); e(f"v_and_b32 v19, 0xffff0000, v{20+r}"); e("v_add_f32 v16, v16, v18"); e("v_add_f32 v17, v17, v19")
    e("s_sub_u32 s24, s24, 1"); e("s_cmp_lg_u32 s24, 0"); e(f"s_cbranch_scc1 {name}_lp")
    e("v_lshlrev_b32 v4, 3, v0"); e("ds_write_b64 v4, v[16:17]"); e("s_waitcnt lgkmcnt(0)"); e("s_barrier")
    e("v_lshlrev_b32 v4, 3, v1")
    for w in range(4): e(f"ds_read_b64 v[{20+2*w}:{21+2*w}], v4 offset:{w*512}")
    e("s_waitcnt lgkmcnt(0)")
    for w in range(1,4): e(f"v_add_f32 v20, v20, v{20+2*w}"); e(f"v_add_f32 v21, v21, v{21+2*w}")
    e("s_lshl_b32 s23, s20, 9"); e("v_add_u32 v4, s23, v4"); e("buffer_store_dwordx2 v[20:21], v4, s[8:11], 0 offen")
    footer(e,name); return e.txt(),2048

ks=[]
xs=('ws',WS_X)
ks.append(("prep_kernel",)+prep("prep_kernel")+(316,))
ks.append(("qkv_kernel",)+gemm("qkv_kernel",1024,192,3072,(xs[0],xs[1],4*MB),2048,'wqkv','qkv',3)+(256,))
ks.append(("a3_kernel",)+a3("a3_kernel")+(256,))
ks.append(("wo_kernel",)+gemm("wo_kernel",1024,64,1024,('ws',WS_O,4*MB),2048,'wo','wo',5,xsrc=xs,outdst=('ws',WS_X))+(256,))
ks.append(("w1_kernel",)+gemm("w1_kernel",1024,64,1024,('ws',WS_X,4*MB),2048,'w1','w1',5,outdst=('ws',WS_H),cs_off=3072)+(256,))
ks.append(("w2_kernel",)+gemm("w2_kernel",1024,64,1024,('ws',WS_H,4*MB),2048,'w2','w2',5,xsrc=('ws',WS_X),outdst=('ws',WS_X1))+(256,))
ks.append(("w3_kernel",)+gemm("w3_kernel",1024,224,3584,('ws',WS_X1,4*MB),2048,'w3','w3',3,outdst=('ws',WS_G),cs_off=4096)+(256,))
ks.append(("w4a_kernel",)+gemm("w4a_kernel",3584,64,1024,('ws',WS_G,2048*7168),7168,'w4','w4',4,xsrc=('ws',WS_X),outdst=('ws',WS_X))+(256,))
ks.append(("w4b_kernel",)+gemm("w4b_kernel",3584,64,1024,('ws',WS_G,2048*7168),7168,'w4','w4',4,xsrc=('ws',WS_X),outdst=('out',0))+(256,))
KD={k[0]:k for k in ks}
order=["prep","qkv","a3","wo","w1","w2","w3","w4a","qkv","a3","wo","w1","w2","w3","w4b"]
src=open(f"cdna_kernels/{NAME}.s.ref").read().split("\n")
hdr=[l for l in src if l.startswith(";") and "@launch" not in l and "Override" not in l and "grid=ceil" not in l]
o="\n".join(hdr)+"\n"
for n,t,l,g in [KD[x+"_kernel"] for x in order]: o+=f"; @launch kernel={n} grid=({g},1,1) block=(256,1,1) lds={l}\n"
o+='.amdgcn_target "amdgcn-amd-amdhsa--gfx950"\n.text\n'
for n,t,l,g in ks: o+=t
o+='.section .rodata,"a"\n'
for n,t,l,g in ks:
    o+=f""".p2align 6
.amdhsa_kernel {n}
  .amdhsa_next_free_vgpr 512
  .amdhsa_next_free_sgpr 102
  .amdhsa_accum_offset 256
  .amdhsa_group_segment_fixed_size 0
  .amdhsa_kernarg_size 96
  .amdhsa_user_sgpr_count 2
  .amdhsa_user_sgpr_kernarg_segment_ptr 1
  .amdhsa_system_sgpr_workgroup_id_x 1
.end_amdhsa_kernel
"""
open(f"cdna_kernels/{NAME}.s","w").write(o)
```

```python
import sys
NAME="interleave_layers__linear_kernel_hedgehog__mixer_s_mlp__prompt"
MB=1<<20
WS_X=0; WS_PHIQ=4*MB; WS_O=12*MB; WS_H=16*MB; WS_X1=20*MB; WS_G=24*MB; WS_KVP=40*MB
WS_SX=50*MB; WS_SX1=51*MB; WS_CS=52*MB
KA=dict(x=0,wqkv=8,wphi=16,wo=24,w1=40,w2=48,w3=56,w4=64,out=72,ws=88)
class E:
    def __init__(s): s.l=[]
    def __call__(s,x): s.l.append(x)
    def lab(s,x): s.l.append(x+":")
    def txt(s): return "\n".join(s.l)+"\n"
def srd(e,d,ka,off,size):
    e(f"s_load_dwordx2 s[{d}:{d+1}], s[0:1], {KA[ka]}")
    return (d,off,size)
def srd_fin(e,t):
    d,off,size=t
    if off:
        e(f"s_add_u32 s{d}, s{d}, {off}"); e(f"s_addc_u32 s{d+1}, s{d+1}, 0")
    e(f"s_mov_b32 s{d+2}, {size}"); e(f"s_mov_b32 s{d+3}, 0x00020000")
def header(e,name,nwg):
    e.l.append(f".globl {name}\n.p2align 8\n.type {name},@function"); e.lab(name)
    e(f"s_cmp_ge_u32 s2, {nwg}"); e(f"s_cbranch_scc1 {name}_end")
def footer(e,name):
    e.lab(name+"_end"); e("s_endpgm")
LOG2E=0x3fb8aa3b
def gelu(e,v,t1,t2):
    e(f"v_mul_f32 v{t1}, v{v}, v{v}")
    e(f"v_mul_f32 v{t1}, 0x3d372713, v{t1}")
    e(f"v_fmac_f32 v{t1}, 1.0, v{t1}") if False else None
    e(f"v_add_f32 v{t1}, 1.0, v{t1}")
    e(f"v_mul_f32 v{t1}, v{t1}, v{v}")
    e(f"v_mul_f32 v{t1}, 0xc01362dc, v{t1}")
    e(f"v_exp_f32 v{t1}, v{t1}")
    e("s_nop 0")
    e(f"v_add_f32 v{t1}, 1.0, v{t1}")
    e(f"v_rcp_f32 v{t1}, v{t1}")
    e("s_nop 0")
    e(f"v_mul_f32 v{v}, v{v}, v{t1}")
def rnd2(e,a,b,t):
    e(f"v_cvt_pk_bf16_f32 v{t}, v{a}, v{b}")
    e(f"v_lshlrev_b32 v{a}, 16, v{t}")
    e(f"v_and_b32 v{b}, 0xffff0000, v{t}")

def swzmask(BN,row):
    m=(row>>3)&1
    if BN!=224: m|=((row>>1)&1)<<1
    return m

def gemm(name,K,BN,LDB,Asrc,LDA,Bkey,epi,S,xsrc=None,outdst=None,cs_off=0):
    e=E(); header(e,name,256)
    NT=BN//32; NBI=BN//32; CPR=BN//8; RS=BN*2
    ASZ=16384; STG=ASZ+64*RS; D=4+NBI; nIter=K//64
    STATOFF=S*STG
    lds=STATOFF+1024
    t=[srd(e,4,Asrc[0],Asrc[1],Asrc[2]), srd(e,8,Bkey,0,K*LDB*2)]
    e("s_and_b32 s20, s2, 7"); e("s_lshr_b32 s21, s2, 3")
    e("s_lshr_b32 s22, s20, 1"); e("s_lshl_b32 s22, s22, 2"); e("s_and_b32 s23, s21, 3"); e("s_add_u32 s22, s22, s23")
    e("s_and_b32 s23, s20, 1"); e("s_lshl_b32 s23, s23, 3"); e("s_lshr_b32 s24, s21, 2"); e("s_add_u32 s23, s23, s24")
    e("v_and_b32 v1, 63, v0"); e("v_lshrrev_b32 v2, 6, v0")
    e("s_waitcnt lgkmcnt(0)")
    for x in t: srd_fin(e,x)
    e("v_lshrrev_b32 v3, 3, v1"); e("v_and_b32 v4, 7, v1"); e("v_xor_b32 v4, v4, v3"); e("v_lshlrev_b32 v4, 4, v4")
    e("s_lshl_b32 s25, s22, 7"); e("v_lshlrev_b32 v5, 5, v2"); e("v_add_u32 v5, s25, v5"); e("v_add_u32 v5, v5, v3")
    e(f"s_mov_b32 s26, {LDA}"); e("v_mul_lo_u32 v5, v5, s26"); e("v_add_u32 v10, v5, v4")
    for i in range(1,4): e(f"v_add_u32 v{10+i}, {i*8*LDA}, v10")
    Mg=-(-65536//CPR)
    for idx in range(64*4*NBI): assert (idx*Mg)>>16==idx//CPR
    for i in range(NBI):
        e(f"v_mul_u32_u24 v3, {NBI*64}, v2"); e(f"v_add_u32 v3, {i*64}, v3"); e("v_add_u32 v3, v3, v1")
        e(f"v_mul_u32_u24 v4, {Mg}, v3"); e("v_lshrrev_b32 v4, 16, v4")
        e(f"v_mul_u32_u24 v5, {CPR}, v4"); e("v_sub_u32 v5, v3, v5")
        e("v_bfe_u32 v6, v4, 3, 1")
        if BN!=224:
            e("v_bfe_u32 v7, v4, 1, 1"); e("v_lshl_or_b32 v6, v7, 1, v6")
        e("v_lshlrev_b32 v6, 1, v6"); e("v_xor_b32 v5, v5, v6")
        if epi=="qkv":
            e("v_lshrrev_b32 v6, 1, v5")
            e("v_mul_u32_u24 v7, 43, v6"); e("v_lshrrev_b32 v7, 8, v7")
            e("v_mul_u32_u24 v8, 12, v7"); e("v_sub_u32 v8, v5, v8")
            e("v_lshrrev_b32 v9, 2, v8"); e("v_and_b32 v8, 3, v8")
            e("v_lshlrev_b32 v9, 11, v9"); e("v_lshl_add_u32 v9, v7, 6, v9"); e("v_lshl_add_u32 v9, v8, 4, v9")
            e("s_lshl_b32 s25, s23, 7"); e("v_add_u32 v9, s25, v9")
        else:
            e(f"s_mul_i32 s25, s23, {BN*2}"); e("v_lshlrev_b32 v9, 4, v5"); e("v_add_u32 v9, s25, v9")
        e(f"v_mul_u32_u24 v4, {LDB*2}, v4"); e(f"v_add_u32 v{14+i}, v4, v9")
    e("v_lshrrev_b32 v3, 1, v2"); e("v_lshlrev_b32 v3, 6, v3"); e("v_and_b32 v4, 15, v1"); e("v_add_u32 v3, v3, v4"); e("v_lshlrev_b32 v3, 7, v3")
    e("v_lshrrev_b32 v5, 4, v1"); e("v_and_b32 v6, 7, v1"); e("v_xor_b32 v5, v5, v6"); e("v_lshlrev_b32 v5, 4, v5")
    e("v_add_u32 v21, v3, v5"); e("v_xor_b32 v22, 64, v21")
    e("v_lshrrev_b32 v3, 4, v1"); e("v_bfe_u32 v4, v1, 2, 2"); e("v_lshl_add_u32 v5, v3, 3, v4")
    e(f"v_mul_u32_u24 v5, {RS}, v5"); e("v_and_b32 v6, 3, v1"); e("v_lshl_add_u32 v5, v6, 3, v5"); e(f"v_add_u32 v5, {ASZ}, v5")
    e("v_and_b32 v6, 1, v3")
    if BN!=224:
        e("v_bfe_u32 v7, v1, 3, 1"); e("v_lshl_or_b32 v6, v7, 1, v6")
    e("v_and_b32 v7, 1, v2"); e(f"v_mul_u32_u24 v7, {NT}, v7")
    for nt in range(NT):
        e(f"v_add_u32 v8, {nt}, v7"); e("v_xor_b32 v8, v8, v6"); e(f"v_lshl_add_u32 v{25+nt}, v8, 5, v5")
    for r in range(4*4*NT): e(f"v_accvgpr_write_b32 a{r}, 0")
    def dma(stage,looped):
        out=[]; b=stage%S
        if not looped:
            out.append(f"s_mov_b32 s16, {stage*128}"); out.append(f"s_mov_b32 s17, {stage*64*LDB*2}")
            if epi=="w2" and stage%4==0:
                g=stage//4; prev=[-1,1,-2,2][g-1] if g>0 else 0
                cur=[-1,1,-2,2][g]
                for i in range(4): out.append(f"v_add_u32 v{10+i}, {((cur-prev)*LDA)&0xffffffff}, v{10+i}")
        for i in range(4):
            out.append(f"s_mov_b32 m0, {b*STG}+{i*1024}+s_wA");
            out.append(f"buffer_load_dwordx4 v{10+i}, s[4:7], s16 offen lds")
        for i in range(NBI):
            out.append(f"s_mov_b32 m0, {b*STG+ASZ+i*1024}+s_wB")
            out.append(f"buffer_load_dwordx4 v{14+i}, s[8:11], s17 offen lds")
        if looped:
            out.append("s_add_u32 s16, s16, 128"); out.append(f"s_add_u32 s17, s17, {64*LDB*2}")
        res=[]
        for o in out:
            if "+s_w" in o:
                imm=eval(o.split("m0, ")[1].rsplit("+",1)[0]); r="s27" if o.endswith("s_wA") else "s28"
                res.append(f"s_add_u32 m0, {r}, {imm}"); res.append("s_nop 0")
            else: res.append(o)
        return res
    e("v_readfirstlane_b32 s27, v2"); e("s_nop 3"); e(f"s_mul_i32 s28, s27, {NBI*1024}"); e("s_lshl_b32 s27, s27, 12")
    def reads(stage,h,st):
        b=stage%S; o=[]
        a0=40 if st==0 else 84; b0=56 if st==0 else 100
        o.append(f"v_add_u32 v23, {b*STG}, v{21+h}")
        for nt in range(NT): o.append(f"v_add_u32 v{32+nt}, {b*STG}, v{25+nt}")
        for mt in range(4): o.append(f"ds_read_b128 v[{a0+4*mt}:{a0+4*mt+3}], v23 offset:{mt*2048}")
        for nt in range(NT):
            for r in range(2):
                o.append(f"ds_read_b64_tr_b16 v[{b0+4*nt+2*r}:{b0+4*nt+2*r+1}], v{32+nt} offset:{(32*h+4*r)*RS}")
        return o
    def mfmas(st):
        a0=40 if st==0 else 84; b0=56 if st==0 else 100; o=[]
        for nt in range(NT):
            for mt in range(4):
                c=(mt*NT+nt)*4; A=f"v[{a0+4*mt}:{a0+4*mt+3}]"; B=f"v[{b0+4*nt}:{b0+4*nt+3}]"
                if epi=="qkv" and nt>=4: o.append(f"v_mfma_f32_16x16x32_bf16 a[{c}:{c+3}], {A}, {B}, a[{c}:{c+3}]")
                else: o.append(f"v_mfma_f32_16x16x32_bf16 a[{c}:{c+3}], {B}, {A}, a[{c}:{c+3}]")
        return o
    def inter(m,f):
        n=len(m); k=0
        for i,x in enumerate(m):
            e(x)
            tgt=(len(f)*(i+1))//n
            while k<tgt: e(f[k]); k+=1
    looped = nIter>16
    if looped: e("s_mov_b32 s16, 0"); e("s_mov_b32 s17, 0")
    for s_ in range(S-1):
        for x in dma(s_,looped): e(x)
    if epi in("qkv","w1","w3","w2"):
        so=WS_SX1 if epi=="w3" else WS_SX
        tt=srd(e,12,'ws',so,2048*256); e("s_waitcnt lgkmcnt(0)"); srd_fin(e,tt)
        e("s_lshl_b32 s25, s22, 15"); e("v_lshlrev_b32 v3, 7, v0"); e("v_add_u32 v3, s25, v3")
        for i in range(8): e(f"buffer_load_dwordx4 v[{128+4*i}:{131+4*i}], v3, s[12:15], 0 offen offset:{16*i}")
        e("s_waitcnt vmcnt(0)")
        for i in range(1,16):
            e(f"v_add_f32 v128, v128, v{128+2*i}"); e(f"v_add_f32 v129, v129, v{129+2*i}")
        e("s_nop 1")
        e("v_add_f32_dpp v128, v128, v128 quad_perm:[1,0,3,2] row_mask:0xf bank_mask:0xf")
        e("v_add_f32_dpp v129, v129, v129 quad_perm:[1,0,3,2] row_mask:0xf bank_mask:0xf")
        e("v_mul_f32 v128, 0x3a800000, v128"); e("v_mul_f32 v129, 0x3a800000, v129")
        e("v_fma_f32 v129, -v128, v128, v129"); e("v_max_f32 v129, 0, v129")
        e("v_add_f32 v130, 0x3727c5ac, v129"); e("v_rsq_f32 v130, v130"); e("s_nop 0")
        if epi=="w1":
            e("v_mul_f32 v131, v130, v130"); e("v_mul_f32 v131, v131, v129"); e("v_add_f32 v131, 0x3727c5ac, v131")
            e("v_rsq_f32 v131, v131"); e("s_nop 0"); e("v_mul_f32 v130, v130, v131")
        e("v_mov_b32 v129, v130"); e("v_lshrrev_b32 v3, 1, v0"); e("v_lshlrev_b32 v3, 3, v3")
        e(f"v_add_u32 v3, {STATOFF}, v3"); e("ds_write_b64 v3, v[128:129]")
    e(f"s_waitcnt vmcnt({(S-2)*D}) lgkmcnt(0)"); e("s_barrier")
    for x in reads(0,0,0): e(x)
    def iteration(i):
        e("s_waitcnt lgkmcnt(0)")
        inter(mfmas(0),reads(i,1,1))
        if looped: w=(S-3)*D
        else: w=max(0,min(i+S-2,nIter-1)-(i+1))*D
        e(f"s_waitcnt vmcnt({w})"); e("s_barrier"); e("s_waitcnt lgkmcnt(0)")
        f=[]
        if looped or i+S-1<nIter: f+=dma(i+S-1,looped)
        f+=reads(i+1,0,0)
        inter(mfmas(1),f)
    if looped:
        e(f"s_mov_b32 s18, {nIter//S}"); e.lab(name+"_loop")
        for u in range(S): iteration(u)
        e("s_sub_u32 s18, s18, 1"); e("s_cmp_lg_u32 s18, 0"); e(f"s_cbranch_scc1 {name}_loop")
    else:
        for i in range(nIter): iteration(i)
    e("s_waitcnt vmcnt(0) lgkmcnt(0)"); e("s_nop 15"); e("s_nop 7")
    e("v_and_b32 v4, 15, v1"); e("v_lshrrev_b32 v5, 4, v1"); e("v_lshrrev_b32 v6, 1, v2"); e("v_and_b32 v7, 1, v2")
    e("v_lshl_add_u32 v8, v6, 6, v4")
    e("s_lshl_b32 s25, s22, 7"); e("v_add_u32 v9, s25, v8")
    e("v_xor_b32 v60, 16, v1"); e("v_lshlrev_b32 v60, 2, v60"); e("v_xor_b32 v61, 32, v1"); e("v_lshlrev_b32 v61, 2, v61")
    uses_stats = epi in("qkv","w1","w3","w2")
    if uses_stats:
        e("v_lshlrev_b32 v3, 3, v8"); e(f"v_add_u32 v3, {STATOFF}, v3")
        for mt in range(4): e(f"ds_read_b64 v[{64+2*mt}:{65+2*mt}], v3 offset:{mt*128}")
    if epi!="qkv":
        e(f"s_mul_i32 s25, s23, {BN}"); e(f"v_mul_u32_u24 v10, {BN//2}, v7"); e("v_add_u32 v10, s25, v10"); e("v_lshl_add_u32 v10, v5, 2, v10")
        LDO={'w1':1024,'w2':1024,'w3':3584,'w4':1024,'wo':1024}[epi]
        e(f"s_mov_b32 s26, {LDO}"); e("v_mul_lo_u32 v11, v9, s26"); e("v_add_u32 v11, v11, v10"); e("v_lshlrev_b32 v11, 1, v11")
        tl=[srd(e,12,outdst[0],outdst[1],2048*LDO*2)]
        if epi in("w1","w3"): tl.append(srd(e,4,'ws',WS_CS+cs_off*4,4*7680*4-cs_off*4))
        if epi in("w2","w4","wo"): tl.append(srd(e,4,xsrc[0],xsrc[1],4*MB))
        if epi=="w4": tl.append(srd(e,8,'ws',WS_X1,4*MB))
        if epi in("w2","w4","wo"): tl.append(srd(e,16,'ws',WS_SX1 if epi=="w2" else WS_SX,2048*256))
        e("s_waitcnt lgkmcnt(0)")
        for x in tl: srd_fin(e,x)
        if epi in("w1","w3"):
            e("v_lshlrev_b32 v12, 2, v10")
            for nt in range(NT): e(f"buffer_load_dwordx4 v[{72+4*nt}:{75+4*nt}], v12, s[4:7], 0 offen offset:{nt*64}")
            for p in range(1,4):
                e(f"v_add_u32 v13, {p*30720}, v12")
                for nt in range(NT): e(f"buffer_load_dwordx4 v[{128+28*(p-1)+4*nt}:{131+28*(p-1)+4*nt}], v13, s[4:7], 0 offen offset:{nt*64}")
            e("s_waitcnt vmcnt(0)")
            for p in range(1,4):
                for r in range(4*NT): e(f"v_add_f32 v{72+r}, v{72+r}, v{128+28*(p-1)+r}")
        for mt in range(4):
            ro=mt*16*LDO*2
            e(f"v_add_u32 v13, {ro}, v11")
            if epi in("w2","w4","wo"):
                for nt in range(NT):
                    e(f"buffer_load_dwordx2 v[{72+2*nt}:{73+2*nt}], v13, s[4:7], 0 offen offset:{nt*32}")
                    if epi=="w4": e(f"buffer_load_dwordx2 v[{80+2*nt}:{81+2*nt}], v13, s[8:11], 0 offen offset:{nt*32}")
                e("v_mov_b32 v14, 0"); e("v_mov_b32 v15, 0")
            e("s_waitcnt vmcnt(0) lgkmcnt(0)")
            for nt in range(NT):
                c=(mt*NT+nt)*4
                for j in range(4): e(f"v_accvgpr_read_b32 v{104+j}, a{c+j}")
                if epi in("w1","w3"):
                    for j in range(4):
                        e(f"v_fma_f32 v{104+j}, -v{64+2*mt}, v{72+4*nt+j}, v{104+j}"); e(f"v_mul_f32 v{104+j}, v{104+j}, v{65+2*mt}")
                    rnd2(e,104,105,110); rnd2(e,106,107,110)
                    for j in range(4): gelu(e,104+j,111,112)
                    e("v_cvt_pk_bf16_f32 v108, v104, v105"); e("v_cvt_pk_bf16_f32 v109, v106, v107")
                else:
                    rnd2(e,104,105,110); rnd2(e,106,107,110)
                    for p in range(2):
                        e(f"v_lshlrev_b32 v{112+2*p}, 16, v{72+2*nt+p}"); e(f"v_and_b32 v{113+2*p}, 0xffff0000, v{72+2*nt+p}")
                    if epi=="w2":
                        for j in range(4):
                            e(f"v_sub_f32 v{112+j}, v{112+j}, v{64+2*mt}"); e(f"v_mul_f32 v{112+j}, v{112+j}, v{65+2*mt}")
                        rnd2(e,112,113,110); rnd2(e,114,115,110)
                    if epi=="w4":
                        for p in range(2):
                            e(f"v_lshlrev_b32 v{116+2*p}, 16, v{80+2*nt+p}"); e(f"v_and_b32 v{117+2*p}, 0xffff0000, v{80+2*nt+p}")
                        for j in range(4): e(f"v_add_f32 v{104+j}, v{104+j}, v{116+j}")
                        rnd2(e,104,105,110); rnd2(e,106,107,110)
                    for j in range(4): e(f"v_add_f32 v{104+j}, v{104+j}, v{112+j}")
                    rnd2(e,104,105,108); rnd2(e,106,107,109)
                    for j in range(4):
                        e(f"v_add_f32 v14, v14, v{104+j}"); e(f"v_fmac_f32 v15, v{104+j}, v{104+j}")
                e(f"buffer_store_dwordx2 v[108:109], v13, s[12:15], 0 offen offset:{nt*32}")
                e("s_nop 1")
            if epi in("w2","w4","wo"):
                for x in(60,61):
                    e(f"ds_bpermute_b32 v16, v{x}, v14"); e(f"ds_bpermute_b32 v17, v{x}, v15"); e("s_waitcnt lgkmcnt(0)")
                    e("v_add_f32 v14, v14, v16"); e("v_add_f32 v15, v15, v17")
                e(f"v_add_u32 v16, {mt*16}, v9"); e("v_lshlrev_b32 v16, 8, v16")
                e("s_lshl_b32 s25, s23, 4"); e("v_add_u32 v16, s25, v16"); e("v_lshl_add_u32 v16, v7, 3, v16")
                e("v_cmp_gt_u32 vcc, 16, v1"); e("s_and_saveexec_b64 s[30:31], vcc")
                e("buffer_store_dwordx2 v[14:15], v16, s[16:19], 0 offen"); e("s_mov_b64 exec, s[30:31]"); e("s_nop 1")
    else:
        tl=[srd(e,4,'ws',WS_CS,4*7680*4),srd(e,8,'wphi',0,65536),srd(e,12,'ws',WS_PHIQ,8*MB),srd(e,16,'ws',WS_KVP,32*32*2112*4)]
        e("s_waitcnt lgkmcnt(0)")
        for x in tl: srd_fin(e,x)
        e("s_lshl_b32 s25, s23, 1"); e("v_add_u32 v10, s25, v7")
        e("v_lshlrev_b32 v11, 5, v10"); e("v_lshl_add_u32 v12, v5, 2, v11"); e("v_lshlrev_b32 v12, 2, v12")
        for nt in range(4): e(f"buffer_load_dwordx4 v[{72+4*nt}:{75+4*nt}], v12, s[4:7], 0 offen offset:{(nt>>1)*0+(nt&1)*64}" if nt<2 else f"buffer_load_dwordx4 v[{72+4*nt}:{75+4*nt}], v13, s[4:7], 0 offen offset:{(nt&1)*64}") if nt!=1 else (e(f"buffer_load_dwordx4 v[76:79], v12, s[4:7], 0 offen offset:64"), e("v_add_u32 v13, 4096, v12"))
        e("v_add_u32 v14, v11, v4"); e("v_lshlrev_b32 v14, 2, v14"); e("v_add_u32 v14, 8192, v14")
        e("buffer_load_dword v88, v14, s[4:7], 0 offen"); e("buffer_load_dword v89, v14, s[4:7], 0 offen offset:64")
        for p in range(1,4):
            b=200+18*(p-1)
            e(f"v_add_u32 v17, {p*30720}, v12"); e(f"v_add_u32 v18, {p*30720}, v13"); e(f"v_add_u32 v19, {p*30720}, v14")
            for nt in range(4): e(f"buffer_load_dwordx4 v[{b+4*nt}:{b+3+4*nt}], v{17+(nt>>1)}, s[4:7], 0 offen offset:{(nt&1)*64}")
            e(f"buffer_load_dword v{b+16}, v19, s[4:7], 0 offen"); e(f"buffer_load_dword v{b+17}, v19, s[4:7], 0 offen offset:64")
        e("s_waitcnt vmcnt(0)")
        for p in range(1,4):
            for r in range(18): e(f"v_add_f32 v{72+r}, v{72+r}, v{200+18*(p-1)+r}")
        e("v_lshl_add_u32 v15, v6, 6, 0"); e("v_lshl_add_u32 v15, v5, 2, v15"); e("v_lshlrev_b32 v15, 3, v15"); e(f"v_add_u32 v15, {STATOFF}, v15")
        e("v_lshlrev_b32 v16, 11, v10"); e("v_lshl_add_u32 v16, v5, 8, v16"); e("v_lshl_add_u32 v16, v4, 1, v16")
        for ft in range(2):
            for dt in range(2):
                for j in range(4):
                    e(f"buffer_load_ushort v{128+(ft*2+dt)*4+j}, v16, s[8:11], 0 offen offset:{dt*1024+j*64+ft*32}")
        e("s_waitcnt vmcnt(0)")
        for fd in range(4):
            e(f"v_lshl_or_b32 v{90+2*fd}, v{129+4*fd}, 16, v{128+4*fd}"); e(f"v_lshl_or_b32 v{91+2*fd}, v{131+4*fd}, 16, v{130+4*fd}")
        e("v_mov_b32 v98, 0x3f803f80"); e("v_mov_b32 v99, 0x3f803f80")
        for r in range(48): e(f"v_accvgpr_write_b32 a{112+r}, 0")
        for mt in range(4):
            e("s_waitcnt lgkmcnt(0)")
            e(f"ds_read_b128 v[160:163], v15 offset:{mt*128}"); e(f"ds_read_b128 v[164:167], v15 offset:{mt*128+16}")
            for nt in range(4):
                c=(mt*NT+nt)*4
                for j in range(4):
                    e(f"v_accvgpr_read_b32 v{104+j}, a{c+j}"); e(f"v_fma_f32 v{104+j}, -v{64+2*mt}, v{72+4*nt+j}, v{104+j}"); e(f"v_mul_f32 v{104+j}, v{104+j}, v{65+2*mt}")
                e(f"v_cvt_pk_bf16_f32 v{168+2*nt}, v104, v105"); e(f"v_cvt_pk_bf16_f32 v{169+2*nt}, v106, v107")
            e("s_waitcnt lgkmcnt(0)")
            for nt in range(2):
                c=(mt*NT+4+nt)*4
                for j in range(4):
                    e(f"v_accvgpr_read_b32 v{104+j}, a{c+j}"); e(f"v_fma_f32 v{104+j}, -v{160+2*j}, v{88+nt}, v{104+j}"); e(f"v_mul_f32 v{104+j}, v{104+j}, v{161+2*j}")
                e(f"v_cvt_pk_bf16_f32 v{176+2*nt}, v104, v105"); e(f"v_cvt_pk_bf16_f32 v{177+2*nt}, v106, v107")
            e("s_nop 1")
            for ft in range(2):
                for dt in range(2):
                    cq="0" if dt==0 else f"v[{180+4*ft}:{183+4*ft}]"; ck="0" if dt==0 else f"v[{188+4*ft}:{191+4*ft}]"
                    W=f"v[{90+2*(ft*2+dt)}:{91+2*(ft*2+dt)}]"
                    e(f"v_mfma_f32_16x16x16_bf16 v[{180+4*ft}:{183+4*ft}], {W}, v[{168+2*dt}:{169+2*dt}], {cq}")
                    e(f"v_mfma_f32_16x16x16_bf16 v[{188+4*ft}:{191+4*ft}], v[{172+2*dt}:{173+2*dt}], {W}, {ck}")
            e("s_nop 15")
            for r in range(0,16,2): rnd2(e,180+r,181+r,110)
            e("v_max3_f32 v104, v180, v181, v182"); e("v_max3_f32 v104, v104, v183, v184"); e("v_max3_f32 v104, v104, v185, v186"); e("v_max_f32 v104, v104, v187")
            e("v_min3_f32 v105, v180, v181, v182"); e("v_min3_f32 v105, v105, v183, v184"); e("v_min3_f32 v105, v105, v185, v186"); e("v_min_f32 v105, v105, v187")
            for x in(60,61):
                e(f"ds_bpermute_b32 v106, v{x}, v104"); e(f"ds_bpermute_b32 v107, v{x}, v105"); e("s_waitcnt lgkmcnt(0)")
                e("v_max_f32 v104, v104, v106"); e("v_min_f32 v105, v105, v107")
            e("v_mov_b32 v106, 0"); e("v_mov_b32 v107, 0")
            for r in range(8):
                e(f"v_sub_f32 v{128+r}, v{180+r}, v104"); e(f"v_sub_f32 v{136+r}, v105, v{180+r}")
                e(f"v_mul_f32 v{128+r}, {LOG2E}, v{128+r}"); e(f"v_mul_f32 v{136+r}, {LOG2E}, v{136+r}")
                e(f"v_exp_f32 v{128+r}, v{128+r}"); e(f"v_exp_f32 v{136+r}, v{136+r}"); e("s_nop 0")
                e(f"v_add_f32 v106, v106, v{128+r}"); e(f"v_add_f32 v107, v107, v{136+r}")
            for x in(60,61):
                e(f"ds_bpermute_b32 v108, v{x}, v106"); e(f"ds_bpermute_b32 v109, v{x}, v107"); e("s_waitcnt lgkmcnt(0)")
                e("v_add_f32 v106, v106, v108"); e("v_add_f32 v107, v107, v109")
            e("v_rcp_f32 v106, v106"); e("v_rcp_f32 v107, v107"); e("s_nop 0")
            for r in range(8):
                e(f"v_mul_f32 v{128+r}, v{128+r}, v106"); e(f"v_mul_f32 v{136+r}, v{136+r}, v107")
            e(f"v_add_u32 v108, {mt*16}, v9"); e("v_lshl_add_u32 v108, v108, 5, v10"); e("v_lshlrev_b32 v108, 7, v108"); e("v_lshl_add_u32 v108, v5, 3, v108")
            for sg in range(2):
                for ft in range(2):
                    b=128+8*sg+4*ft
                    e(f"v_cvt_pk_bf16_f32 v110, v{b}, v{b+1}"); e(f"v_cvt_pk_bf16_f32 v111, v{b+2}, v{b+3}")
                    e(f"buffer_store_dwordx2 v[110:111], v108, s[12:15], 0 offen offset:{sg*64+ft*32}"); e("s_nop 1")
            for j in range(4):
                a,b=188+j,192+j
                e(f"v_max_f32 v104, v{a}, v{b}"); e(f"v_min_f32 v105, v{a}, v{b}")
                for sh in(8,4,2,1):
                    e("s_nop 1")
                    e(f"v_max_f32_dpp v104, v104, v104 row_ror:{sh} row_mask:0xf bank_mask:0xf")
                    e(f"v_min_f32_dpp v105, v105, v105 row_ror:{sh} row_mask:0xf bank_mask:0xf")
                for q_,r in enumerate((a,b)):
                    e(f"v_sub_f32 v{128+4*q_+j}, v{r}, v104"); e(f"v_sub_f32 v{136+4*q_+j}, v105, v{r}")
                    e(f"v_mul_f32 v{128+4*q_+j}, {LOG2E}, v{128+4*q_+j}"); e(f"v_mul_f32 v{136+4*q_+j}, {LOG2E}, v{136+4*q_+j}")
                    e(f"v_exp_f32 v{128+4*q_+j}, v{128+4*q_+j}"); e(f"v_exp_f32 v{136+4*q_+j}, v{136+4*q_+j}")
                e("s_nop 0")
                e(f"v_add_f32 v104, v{128+j}, v{132+j}"); e(f"v_add_f32 v105, v{136+j}, v{140+j}")
                for sh in(8,4,2,1):
                    e("s_nop 1")
                    e(f"v_add_f32_dpp v104, v104, v104 row_ror:{sh} row_mask:0xf bank_mask:0xf")
                    e(f"v_add_f32_dpp v105, v105, v105 row_ror:{sh} row_mask:0xf bank_mask:0xf")
                e("v_rcp_f32 v104, v104"); e("v_rcp_f32 v105, v105"); e("s_nop 0")
                for q_ in range(2):
                    e(f"v_mul_f32 v{128+4*q_+j}, v{128+4*q_+j}, v104"); e(f"v_mul_f32 v{136+4*q_+j}, v{136+4*q_+j}, v105")
            for fi in range(4):
                e(f"v_cvt_pk_bf16_f32 v{144+2*fi}, v{128+4*fi}, v{129+4*fi}"); e(f"v_cvt_pk_bf16_f32 v{145+2*fi}, v{130+4*fi}, v{131+4*fi}")
            e("s_nop 1")
            for fi in range(4):
                for dt in range(3):
                    c=112+(fi*3+dt)*4; B=f"v[{176+2*dt}:{177+2*dt}]" if dt<2 else "v[98:99]"
                    e(f"v_mfma_f32_16x16x16_bf16 a[{c}:{c+3}], v[{144+2*fi}:{145+2*fi}], {B}, a[{c}:{c+3}]")
        e("s_nop 15")
        e("s_lshl_b32 s25, s22, 1"); e("v_add_u32 v104, s25, v6"); e("v_lshl_add_u32 v104, v10, 5, v104"); e("s_movk_i32 s26, 2112"); e("v_mul_lo_u32 v104, v104, s26")
        e("v_lshl_add_u32 v105, v5, 7, v104"); e("v_add_u32 v105, v105, v4"); e("v_lshlrev_b32 v105, 2, v105")
        for fi in range(4):
            for dt in range(2):
                for j in range(4):
                    e(f"v_accvgpr_read_b32 v106, a{112+(fi*3+dt)*4+j}")
                    e(f"v_add_u32 v107, {fi*2048}, v105"); e(f"buffer_store_dword v106, v107, s[16:19], 0 offen offset:{j*128+dt*64}")
        e("v_lshl_add_u32 v105, v5, 2, v104"); e("v_lshlrev_b32 v105, 2, v105"); e("v_add_u32 v105, 8192, v105")
        e("v_cmp_eq_u32 vcc, 0, v4"); e("s_and_saveexec_b64 s[30:31], vcc")
        for fi in range(4):
            for j in range(4):
                e(f"v_accvgpr_read_b32 v106, a{112+(fi*3+2)*4+j}")
                e(f"buffer_store_dword v106, v105, s[16:19], 0 offen offset:{(fi*16+j)*4}")
        e("s_mov_b64 exec, s[30:31]")
    footer(e,name)
    return e.txt(),lds

def a3(name):
    e=E(); header(e,name,128)
    tl=[srd(e,4,'ws',WS_KVP,32*32*2112*4),srd(e,8,'ws',WS_PHIQ,8*MB),srd(e,12,'ws',WS_O,4*MB)]
    e("s_lshr_b32 s20, s2, 2"); e("s_and_b32 s21, s2, 3")
    e("v_and_b32 v1, 63, v0"); e("v_lshrrev_b32 v2, 6, v0"); e("v_and_b32 v4, 15, v1"); e("v_lshrrev_b32 v5, 4, v1")
    e("s_waitcnt lgkmcnt(0)")
    for x in tl: srd_fin(e,x)
    e("v_lshlrev_b32 v6, 2, v0"); e("v_mov_b32 v7, 0")
    for i in range(7): e(f"ds_write_b32 v6, v7 offset:{i*1024}")
    e("s_waitcnt lgkmcnt(0)"); e("s_barrier")
    e(f"s_mul_i32 s22, s20, {32*2112*4}")
    for it in range(3):
        e(f"v_lshlrev_b32 v8, 2, v0"); e(f"v_add_u32 v8, {it*1024}, v8"); e("v_lshlrev_b32 v9, 2, v8"); e("v_add_u32 v9, s22, v9")
        if it==2: e("v_cmp_gt_u32 vcc, 16, v0"); e("s_and_saveexec_b64 s[30:31], vcc")
        for p in range(32):
            e(f"v_add_u32 v11, {p*2112*4}, v9"); e(f"buffer_load_dwordx4 v[{20+4*p}:{23+4*p}], v11, s[4:7], 0 offen")
        e("s_waitcnt vmcnt(0)")
        for p in range(1,32):
            for c in range(4): e(f"v_add_f32 v{20+c}, v{20+c}, v{20+4*p+c}")
        e("v_lshrrev_b32 v12, 5, v8"); e("v_and_b32 v13, 31, v8")
        if it==2: e("v_subrev_u32 v12, 2048, v8"); e("v_mov_b32 v13, 32")
        e("v_mul_u32_u24 v13, 144, v13"); e("v_lshl_add_u32 v13, v12, 1, v13")
        for c in range(4):
            e(f"v_cvt_pk_bf16_f32 v10, v{20+c}, v{20+c}"); e(f"ds_write_b16 v13, v10 offset:{c*144 if it<2 else c*2}")
        if it==2: e("s_mov_b64 exec, s[30:31]")
    e("s_waitcnt lgkmcnt(0)"); e("s_barrier")
    e("v_mul_u32_u24 v8, 144, v4"); e("v_lshl_add_u32 v8, v5, 4, v8")
    for dt in range(3):
        for kt in range(2): e(f"ds_read_b128 v[{60+(dt*2+kt)*4}:{63+(dt*2+kt)*4}], v8 offset:{dt*16*144+kt*64}")
    e("s_lshl_b32 s23, s21, 9"); e("v_lshl_add_u32 v9, v2, 7, v4"); e("v_add_u32 v9, s23, v9")
    e("v_lshl_add_u32 v10, v9, 5, s20"); e("v_lshlrev_b32 v10, 7, v10"); e("v_lshl_add_u32 v10, v5, 4, v10")
    for mt in range(8):
        for kt in range(2): e(f"v_add_u32 v11, {mt*16*4096+kt*64}, v10"); e(f"buffer_load_dwordx4 v[{100+(mt*2+kt)*4}:{103+(mt*2+kt)*4}], v11, s[8:11], 0 offen")
    e("v_lshlrev_b32 v12, 2, v4")
    e("v_lshlrev_b32 v13, 11, v9"); e("s_lshl_b32 s24, s20, 6"); e("v_add_u32 v13, s24, v13"); e("v_lshl_add_u32 v13, v5, 3, v13")
    e("s_waitcnt vmcnt(0) lgkmcnt(0)")
    for mt in range(8):
        for dt in range(3):
            for kt in range(2):
                c="0" if kt==0 else f"v[{180+4*dt}:{183+4*dt}]"
                e(f"v_mfma_f32_16x16x32_bf16 v[{180+4*dt}:{183+4*dt}], v[{60+(dt*2+kt)*4}:{63+(dt*2+kt)*4}], v[{100+(mt*2+kt)*4}:{103+(mt*2+kt)*4}], {c}")
        e("s_nop 15")
        e("ds_bpermute_b32 v192, v12, v188"); e("s_waitcnt lgkmcnt(0)")
        e("v_cvt_pk_bf16_f32 v192, v192, v192"); e("v_lshlrev_b32 v192, 16, v192"); e("v_add_f32 v192, 0x358637bd, v192")
        e("v_cvt_pk_bf16_f32 v192, v192, v192"); e("v_lshlrev_b32 v192, 16, v192"); e("v_rcp_f32 v192, v192")
        for r in range(0,8,2): rnd2(e,180+r,181+r,193)
        for r in range(8): e(f"v_mul_f32 v{180+r}, v{180+r}, v192")
        e(f"v_add_u32 v14, {mt*16*2048}, v13")
        for dt in range(2):
            e(f"v_cvt_pk_bf16_f32 v194, v{180+4*dt}, v{181+4*dt}"); e(f"v_cvt_pk_bf16_f32 v195, v{182+4*dt}, v{183+4*dt}")
            e(f"buffer_store_dwordx2 v[194:195], v14, s[12:15], 0 offen offset:{dt*32}"); e("s_nop 1")
    footer(e,name); return e.txt(),7168

def prep(name):
    e=E(); header(e,name,496)
    e("v_and_b32 v1, 63, v0"); e("v_lshrrev_b32 v2, 6, v0")
    e("s_cmp_ge_u32 s2, 256"); e(f"s_cbranch_scc1 {name}_cs")
    tl=[srd(e,4,'x',0,4*MB),srd(e,8,'ws',WS_SX,2048*256),srd(e,12,'ws',WS_X,4*MB)]; e("s_waitcnt lgkmcnt(0)")
    for x in tl: srd_fin(e,x)
    e("s_lshl_b32 s20, s2, 3"); e("v_lshl_add_u32 v3, v2, 1, s20")
    for rr in range(2):
        e(f"v_add_u32 v4, {rr}, v3"); e("v_lshlrev_b32 v5, 11, v4"); e("v_lshl_add_u32 v5, v1, 5, v5")
        e("buffer_load_dwordx4 v[8:11], v5, s[4:7], 0 offen"); e("buffer_load_dwordx4 v[12:15], v5, s[4:7], 0 offen offset:16")
        e("v_mov_b32 v16, 0"); e("v_mov_b32 v17, 0"); e("s_waitcnt vmcnt(0)")
        e("buffer_store_dwordx4 v[8:11], v5, s[12:15], 0 offen"); e("buffer_store_dwordx4 v[12:15], v5, s[12:15], 0 offen offset:16")
        for r in range(8,16):
            e(f"v_lshlrev_b32 v18, 16, v{r}"); e(f"v_and_b32 v19, 0xffff0000, v{r}")
            e("v_add_f32 v16, v16, v18"); e("v_fmac_f32 v17, v18, v18"); e("v_add_f32 v16, v16, v19"); e("v_fmac_f32 v17, v19, v19")
        e("s_nop 1")
        e("v_add_f32_dpp v16, v16, v16 quad_perm:[1,0,3,2] row_mask:0xf bank_mask:0xf"); e("v_add_f32_dpp v17, v17, v17 quad_perm:[1,0,3,2] row_mask:0xf bank_mask:0xf")
        e("v_lshlrev_b32 v5, 8, v4"); e("v_lshrrev_b32 v6, 1, v1"); e("v_lshl_add_u32 v5, v6, 3, v5")
        e("buffer_store_dwordx2 v[16:17], v5, s[8:11], 0 offen"); e("s_nop 1")
    e(f"s_branch {name}_end")
    e.lab(name+"_cs")
    e("s_sub_u32 s20, s2, 256"); e("s_and_b32 s26, s20, 3"); e("s_lshr_b32 s20, s20, 2")
    e("s_load_dwordx2 s[4:5], s[0:1], 8"); e("s_load_dwordx2 s[12:13], s[0:1], 40"); e("s_load_dwordx2 s[14:15], s[0:1], 56")
    tl=[srd(e,8,'ws',WS_CS,4*7680*4)]; e("s_waitcnt lgkmcnt(0)"); srd_fin(e,tl[0])
    e("s_mov_b32 s21, s20"); e("s_mov_b32 s22, 6144"); e(f"s_mov_b32 s6, {1024*6144}")
    e("s_cmp_lt_u32 s20, 24"); e(f"s_cbranch_scc1 {name}_go")
    e("s_mov_b64 s[4:5], s[12:13]"); e("s_sub_u32 s21, s20, 24"); e("s_mov_b32 s22, 2048"); e(f"s_mov_b32 s6, {1024*2048}")
    e("s_cmp_lt_u32 s20, 32"); e(f"s_cbranch_scc1 {name}_go")
    e("s_mov_b64 s[4:5], s[14:15]"); e("s_sub_u32 s21, s20, 32"); e("s_mov_b32 s22, 7168"); e(f"s_mov_b32 s6, {1024*7168}")
    e.lab(name+"_go"); e("s_mov_b32 s7, 0x00020000")
    e("s_lshl_b32 s27, s26, 8"); e("v_lshl_add_u32 v3, v2, 6, s27"); e("v_mul_lo_u32 v3, v3, s22"); e("s_lshl_b32 s23, s21, 8"); e("v_add_u32 v3, s23, v3"); e("v_lshl_add_u32 v3, v1, 2, v3")
    e("v_mov_b32 v16, 0"); e("v_mov_b32 v17, 0"); e("s_mov_b32 s24, 1"); e("s_mov_b32 s25, 0")
    e.lab(name+"_lp")
    for r in range(64):
        e(f"buffer_load_dword v{20+r}, v3, s[4:7], s25 offen"); e("s_add_u32 s25, s25, s22")
    e("s_waitcnt vmcnt(0)")
    for r in range(64):
        e(f"v_lshlrev_b32 v18, 16, v{20+r}"); e(f"v_and_b32 v19, 0xffff0000, v{20+r}"); e("v_add_f32 v16, v16, v18"); e("v_add_f32 v17, v17, v19")
    e("s_sub_u32 s24, s24, 1"); e("s_cmp_lg_u32 s24, 0"); e(f"s_cbranch_scc1 {name}_lp")
    e("v_lshlrev_b32 v4, 3, v0"); e("ds_write_b64 v4, v[16:17]"); e("s_waitcnt lgkmcnt(0)"); e("s_barrier")
    e("v_lshlrev_b32 v4, 3, v1")
    for w in range(4): e(f"ds_read_b64 v[{20+2*w}:{21+2*w}], v4 offset:{w*512}")
    e("s_waitcnt lgkmcnt(0)")
    for w in range(1,4): e(f"v_add_f32 v20, v20, v{20+2*w}"); e(f"v_add_f32 v21, v21, v{21+2*w}")
    e("s_lshl_b32 s23, s20, 9"); e("s_mul_i32 s27, s26, 30720"); e("s_add_u32 s23, s23, s27"); e("v_add_u32 v4, s23, v4"); e("buffer_store_dwordx2 v[20:21], v4, s[8:11], 0 offen")
    footer(e,name); return e.txt(),2048

ks=[]
xs=('ws',WS_X)
ks.append(("prep_kernel",)+prep("prep_kernel")+(496,))
ks.append(("qkv_kernel",)+gemm("qkv_kernel",1024,192,3072,(xs[0],xs[1],4*MB),2048,'wqkv','qkv',3)+(256,))
ks.append(("a3_kernel",)+a3("a3_kernel")+(128,))
ks.append(("wo_kernel",)+gemm("wo_kernel",1024,64,1024,('ws',WS_O,4*MB),2048,'wo','wo',5,xsrc=xs,outdst=('ws',WS_X))+(256,))
ks.append(("w1_kernel",)+gemm("w1_kernel",1024,64,1024,('ws',WS_X,4*MB),2048,'w1','w1',5,outdst=('ws',WS_H),cs_off=3072)+(256,))
ks.append(("w2_kernel",)+gemm("w2_kernel",1024,64,1024,('ws',WS_H,4*MB),2048,'w2','w2',5,xsrc=('ws',WS_X),outdst=('ws',WS_X1))+(256,))
ks.append(("w3_kernel",)+gemm("w3_kernel",1024,224,3584,('ws',WS_X1,4*MB),2048,'w3','w3',3,outdst=('ws',WS_G),cs_off=4096)+(256,))
ks.append(("w4a_kernel",)+gemm("w4a_kernel",3584,64,1024,('ws',WS_G,2048*7168),7168,'w4','w4',4,xsrc=('ws',WS_X),outdst=('ws',WS_X))+(256,))
ks.append(("w4b_kernel",)+gemm("w4b_kernel",3584,64,1024,('ws',WS_G,2048*7168),7168,'w4','w4',4,xsrc=('ws',WS_X),outdst=('out',0))+(256,))
KD={k[0]:k for k in ks}
order=["prep","qkv","a3","wo","w1","w2","w3","w4a","qkv","a3","wo","w1","w2","w3","w4b"]
src=open(f"cdna_kernels/{NAME}.s.ref").read().split("\n")
hdr=[l for l in src if l.startswith(";") and "@launch" not in l and "Override" not in l and "grid=ceil" not in l]
o="\n".join(hdr)+"\n"
for n,t,l,g in [KD[x+"_kernel"] for x in order]: o+=f"; @launch kernel={n} grid=({g},1,1) block=(256,1,1) lds={l}\n"
o+='.amdgcn_target "amdgcn-amd-amdhsa--gfx950"\n.text\n'
for n,t,l,g in ks: o+=t
o+='.section .rodata,"a"\n'
for n,t,l,g in ks:
    o+=f""".p2align 6
.amdhsa_kernel {n}
  .amdhsa_next_free_vgpr 512
  .amdhsa_next_free_sgpr 102
  .amdhsa_accum_offset 256
  .amdhsa_group_segment_fixed_size 0
  .amdhsa_kernarg_size 96
  .amdhsa_user_sgpr_count 2
  .amdhsa_user_sgpr_kernarg_segment_ptr 1
  .amdhsa_system_sgpr_workgroup_id_x 1
.end_amdhsa_kernel
"""
open(f"cdna_kernels/{NAME}.s","w").write(o)
```
